```python
import torch

def _softmax(x, axis=-1):
    return torch.softmax(x, dim=axis)
def _gelu(x):
    return torch.nn.functional.gelu(x, approximate="tanh")
def _silu(x):
    return torch.nn.functional.silu(x)
def _sigmoid(x):
    return torch.sigmoid(x)
def _layernorm(x, axis=-1, eps=1e-5):
    m = x.mean(dim=axis, keepdim=True)
    v = x.var(dim=axis, keepdim=True, unbiased=False)
    return (x - m) / torch.sqrt(v + eps)
def _scatter_add(tgt, idx, src, axis=0):
    return tgt.clone().index_add_(axis, idx, src)
def _segment_sum(src, seg, n):
    out = torch.zeros((n,) + src.shape[1:], dtype=src.dtype)
    return out.index_add_(0, seg, src)
def _pad(x, pw):
    flat = tuple(v for pair in reversed(pw) for v in pair)
    return torch.nn.functional.pad(x, flat)

kernel_name = 'standalone__gqa_block_cached__sampling'

def setup_inputs():

    _w = (lambda a: (lambda t: t.to(torch.bfloat16) if t.is_floating_point() else t)(torch.as_tensor(a)))
    B, Sq, D = 16, 32, 512
    Hq, Hkv, Sk, Dh = 32, 8, 4096, 128
    assert Hq % Hkv == 0, (Hq, Hkv)
    return {
        "x": _w((lambda *s: torch.randn(*s, dtype=torch.bfloat16) * 0.8)(B, Sq, D)),
        "k_cache": _w((lambda *s: torch.randn(*s, dtype=torch.bfloat16) * 0.8)(B, Hkv, Sk, Dh)),
        "v_cache": _w((lambda *s: torch.randn(*s, dtype=torch.bfloat16) * 0.05)(B, Hkv, Sk, Dh)),
        "wq": _w((lambda *s: torch.randn(*s, dtype=torch.bfloat16) * 0.8)(D, Hq * Dh) * (D ** -0.5)),
        "wo": _w((lambda *s: torch.randn(*s, dtype=torch.bfloat16) * 0.05)(Hq * Dh, D) * ((Hq * Dh) ** -0.5)),
    }

def reference(x, k_cache, v_cache, wq, wo):
    B, Sq, D = x.shape
    Hq, Dh = 32, 128
    Hkv = k_cache.shape[1]
    rep = Hq // Hkv
    q = (lambda x, *d: x.permute(*d))((x @ wq).reshape(B, Sq, Hq, Dh), 0, 2, 1, 3)
    k = (lambda x, n, axis: torch.repeat_interleave(x, n, dim=axis))(k_cache, rep, axis=1)
    v = (lambda x, n, axis: torch.repeat_interleave(x, n, dim=axis))(v_cache, rep, axis=1)
    scores = torch.einsum("bhqd,bhkd->bhqk", q, k) * (Dh ** -0.5)
    p = _softmax(scores, axis=-1)
    o = torch.einsum("bhqk,bhkd->bhqd", p, v)
    return (lambda x, *d: x.permute(*d))(o, 0, 2, 1, 3).reshape(B, Sq, Hq * Dh) @ wo
```

```python
import re

TRANS = ("v_exp_f32", "v_log_f32", "v_rcp_f32", "v_rsq_f32", "v_sqrt_f32")

def _regs(tok):
    tok = tok.strip()
    tok = tok.lstrip("-")
    m = re.fullmatch(r"abs\((.*)\)", tok)
    if m: tok = m.group(1)
    m = re.fullmatch(r"([vas])(\d+)", tok)
    if m: return {(m.group(1), int(m.group(2)))}
    m = re.fullmatch(r"([vas])\[(\d+):(\d+)\]", tok)
    if m: return {(m.group(1), i) for i in range(int(m.group(2)), int(m.group(3)) + 1)}
    if tok == "vcc": return {("s", 106), ("s", 107)}
    if tok == "exec": return {("s", 126), ("s", 127)}
    if tok == "m0": return {("s", 124)}
    return set()

class Ins:
    def __init__(self, text):
        self.text = text
        t = text.split(";")[0].strip()
        self.label = t[:-1] if t.endswith(":") else None
        self.dir = t.startswith(".") or t == ""
        self.op = "" if (self.label or self.dir) else t.split()[0]
        rest = t[len(self.op):].strip() if self.op else ""
        ops = [o.strip() for o in rest.split(",")] if rest else []
        if ops:
            last = ops[-1].split()
            self.mods = last[1:]
            ops[-1] = last[0] if last else ""
        else:
            self.mods = []
        self.ops = ops
        op = re.sub(r"_e(32|64)$", "", self.op)
        self.base = op
        R = [_regs(o) for o in ops]
        self.w, self.r = set(), set()
        self.kind = "other"
        self.srcC = set(); self.srcAB = set(); self.passes = 0
        if op.startswith("v_mfma"):
            self.kind = "mfma"
            self.w = R[0]; self.srcAB = R[1] | R[2]; self.srcC = R[3]; self.r = self.srcAB | self.srcC
            self.passes = 8 if "32x32" in op else 4
        elif op.startswith("v_"):
            self.kind = "valu"
            if op.startswith("v_permlane") and "swap" in op:
                self.w = R[0] | R[1]; self.r = R[0] | R[1]
            elif op in ("v_add_co_u32", "v_addc_co_u32", "v_sub_co_u32"):
                self.w = R[0] | R[1]; self.r = set().union(*R[2:])
            else:
                self.w = R[0]; self.r = set().union(*R[1:]) if len(R) > 1 else set()
                if op.startswith("v_fmac") or op.startswith("v_writelane"): self.r |= R[0]
        elif op.startswith("ds_"):
            self.kind = "ds"
            if op.startswith("ds_read") or op.startswith("ds_bpermute"):
                self.w = R[0]; self.r = set().union(*R[1:])
            else:
                self.r = set().union(*R)
        elif op.startswith("buffer_") or op.startswith("global_"):
            self.kind = "vmem"
            if "lds" in self.mods or "load_lds" in op:
                self.r = set().union(*R) | {("s", 124)}; self.ldsdma = True
            elif "load" in op or ("atomic" in op and "sc0" in self.mods):
                self.w = R[0]; self.r = set().union(*R[1:])
                if "atomic" in op and op.startswith("buffer"): self.r |= R[0]
            elif R:
                self.r = set().union(*R)
            self.storedata = set()
            if "store" in op and ("x4" in op or "x3" in op):
                self.storedata = R[0] if op.startswith("buffer") else R[1]
        elif op.startswith("s_"):
            self.kind = "salu"
            if op.startswith(("s_cmp", "s_bitcmp", "s_cbranch", "s_branch", "s_waitcnt", "s_nop", "s_barrier", "s_endpgm", "s_sleep", "s_setprio")):
                self.r = set().union(*R) if R else set()
            else:
                self.w = R[0] if R else set(); self.r = set().union(*R[1:]) if len(R) > 1 else set()
        self.states = 0 if (self.label or self.dir) else 1
        if op == "s_nop": self.states = int(ops[0], 0) + 1

def need(p, c):
    n = 0
    vw = {x for x in p.w if x[0] in "va"}
    sw = {x for x in p.w if x[0] == "s"}
    if p.kind == "valu":
        if c.kind == "mfma" and (vw & c.r): n = max(n, 2)
        if c.kind == "mfma" and ("s", 126) in sw: n = max(n, 4)
        if c.kind == "valu":
            if c.base.startswith("v_permlane") and (vw & c.r): n = max(n, 2)
            if c.base.startswith(("v_readlane", "v_readfirstlane")) and (vw & c.r): n = max(n, 1)
            if p.base in TRANS and c.base not in TRANS and (vw & (c.r)): n = max(n, 1)
            if sw & c.r:
                n = max(n, 4 if c.base.startswith(("v_readlane", "v_writelane")) else 2)
            if c.base.startswith("v_cndmask") and len(c.ops) == 4 and (sw & _regs(c.ops[3])): n = max(n, 2)
        if c.kind == "vmem" and (sw & c.r): n = max(n, 5)
    if p.kind == "mfma":
        big = 12 if p.passes == 8 else 8
        if c.kind == "mfma":
            if p.w & c.srcAB: n = max(n, big)
            if (p.w & c.srcC) and not (p.w == c.srcC and p.passes == c.passes): n = max(n, big - 2)
            if (p.w & c.w) and not (p.w == c.srcC and p.passes == c.passes): n = max(n, big - 2)
        elif c.kind in ("valu", "ds", "vmem"):
            if p.w & (c.r | c.w): n = max(n, big)
            if c.kind == "valu" and (p.srcC & c.w): n = max(n, 7 if p.passes == 8 else 3)
    if p.kind == "salu" and ("s", 124) in p.w and c.kind == "vmem" and getattr(c, "ldsdma", False): n = max(n, 1)
    if p.kind == "vmem" and p.storedata and (p.storedata & c.w): n = max(n, 2 if c.kind == "valu" else 1)
    return n

class Asm:
    def __init__(self):
        self.L = []
    def __call__(self, s):
        for line in s.split("\n"):
            line = line.strip()
            if line: self.L.append(line)
    def text(self):
        return "\n".join(self.L) + "\n"

def check(lines, fix=True, verbose=True):
    total = 0
    for _ in range(200):
        ins = [Ins(l) for l in lines]
        start = next(i for i, x in enumerate(ins) if x.label and x.label.endswith("_kernel"))
        lab = {x.label: i for i, x in enumerate(ins) if x.label}
        preds = [[] for _ in ins]
        for i, x in enumerate(ins):
            if i + 1 < len(ins) and x.op not in ("s_branch", "s_endpgm"):
                preds[i + 1].append(i)
            if x.op.startswith(("s_cbranch", "s_branch")):
                preds[lab[x.ops[0]]].append(i)
        bad = None
        for ci in range(start, len(ins)):
            c = ins[ci]
            if c.kind not in ("mfma", "valu", "ds", "vmem"): continue
            stack = [(p, 0) for p in preds[ci]]
            seen = {}
            worst = 0; why = None
            while stack:
                pi, d = stack.pop()
                if d >= 20 or seen.get(pi, 99) <= d: continue
                seen[pi] = d
                p = ins[pi]
                k = need(p, c) if p.states else 0
                if k - d > worst: worst = k - d; why = p
                for q in preds[pi]: stack.append((q, d + p.states))
            if worst > 0:
                bad = (ci, worst, why); break
        if not bad: return lines, total
        ci, worst, why = bad
        if verbose: print("hazard: +%d before [%s] after [%s]" % (worst, ins[ci].text, why.text))
        if not fix: raise SystemExit("hazard")
        lines = lines[:ci] + ["s_nop %d" % (worst - 1)] + lines[ci:]
        total += 1
    raise SystemExit("too many hazards")
```

```python
import sys, struct, math
from asmlib import Asm, check

KN = "standalone__gqa_block_cached__sampling_kernel"
SLOT, NSLOT = 17408, 9
RING = SLOT * NSLOT
MISC = RING
LDS = 163840
OOB = 0x7f000000
WS_Q, WS_H1D, WS_H1L, WS_H2, WS_SYNC, WS_STAMP = 0, 4 << 20, 8 << 20, 16 << 20, 32 << 20, 256 << 20
SY_Q, SY_CLAIM, SY_H1, SY_H2 = 0, 32, 160, 672

def f2u(x): return struct.unpack("<I", struct.pack("<f", x))[0]

sK, sV, sX, sWQ, sWO, sOUT, sDBG, sWS = 8, 12, 16, 20, 24, 28, 32, 36
sW, sS, sB, sH = 40, 41, 42, 43
sSlC, sSlP, sW2176, sW4352 = 44, 45, 46, 47
sK0, sK1, sK2, sRaw, sStep, sJI, sJ, sN = 48, 49, 50, 51, 52, 53, 54, 55
sMI, sMC = 56, 58
sWoI, sWoC, sPar, sC = 60, 61, 62, 63
sThr, sC0, sLane, sClaim = 96, 97, 98, 99
T0 = 64
ST = 80
def srd(n): return "s[%d:%d]" % (n, n + 3)
def s(n): return "s%d" % n
def sp(n): return "s[%d:%d]" % (n, n + 1)

O, Q, S, P, KF, VF, T = 0, 64, (96, 112), (128, 136), 144, 176, 208
vL, vOffK, vOffV, vOffWo, vK0b, vK1b, vVb, vWb = 224, 225, 226, 227, 228, 229, 230, 231
vKa0, vKa1, vVa, vMc, vLs, vB0, vB1, vC, vTk, vMisc, vL16 = 232, 233, 234, 235, 236, 237, 238, 239, 240, 241, 242
vt = [243 + i for i in range(13)]
def v(n): return "v%d" % n
def vr(n, k): return "v[%d:%d]" % (n, n + k - 1)
def ar(n, k): return "a[%d:%d]" % (n, n + k - 1)

def gen(dyn=True, stamps=False, SSTAT=52, cap=3, wo0=12, wostep=2, wopol="", qpol="", stop=None):
    a = Asm()
    D = 128 - 2 * SSTAT
    nst = [0]
    def stamp():
        if stamps:
            a("s_memrealtime %s\ns_waitcnt lgkmcnt(0)" % sp(ST + 2 * nst[0]))
        nst[0] += 1
    def adv(reg, n=1):
        a("s_add_u32 %s, %s, %d" % (s(reg), s(reg), SLOT * n))
        a("s_cmp_ge_u32 %s, %d" % (s(reg), RING))
        a("s_cselect_b32 %s, %d, 0" % (s(T0 + 15), RING))
        a("s_sub_u32 %s, %s, %s" % (s(reg), s(reg), s(T0 + 15)))
    def kv_issue(slot):
        return ["s_cmp_lt_u32 %s, %s" % (s(sJI), s(sN)),
                "s_cselect_b32 %s, %s, %d" % (s(sK0), s(sRaw), OOB),
                "s_add_u32 m0, %s, %s" % (s(slot), s(sW2176)),
                "s_add_u32 %s, %s, %s" % (s(sRaw), s(sRaw), s(sStep)),
                "*buffer_load_dwordx4 %s, %s, %s offen nt lds" % (v(vOffK), srd(sK), s(sK0)),
                "s_add_u32 m0, m0, 64",
                "s_add_u32 %s, %s, 1" % (s(sJI), s(sJI)),
                "*buffer_load_dwordx4 %s, %s, %s offen offset:1024 nt lds" % (v(vOffK), srd(sK), s(sK0)),
                "s_add_u32 m0, m0, %d" % (8704 - 64),
                "s_nop 0",
                "*buffer_load_dwordx4 %s, %s, %s offen nt lds" % (v(vOffV), srd(sV), s(sK2)),
                "s_add_u32 m0, m0, 64",
                "s_nop 0",
                "*buffer_load_dwordx4 %s, %s, %s offen offset:1024 nt lds" % (v(vOffV), srd(sV), s(sK2)),
                "s_mov_b32 %s, %s" % (s(sK2), s(sK1)),
                "s_mov_b32 %s, %s" % (s(sK1), s(sK0))]
    def wo_issue(slot):
        r = ["s_add_u32 m0, %s, %s" % (s(slot), s(sW4352)), "s_nop 0"]
        for i in range(4):
            r.append("*buffer_load_dwordx4 %s, %s, %s offen offset:%d %s lds" % (v(vOffWo), srd(sWO), s(sWoI), 1024 * i, wopol))
            if i < 3: r += ["s_add_u32 m0, m0, 64", "s_nop 0"]
        r.append("s_add_u32 %s, %s, %d" % (s(sWoI), s(sWoI), 16 * 1024))
        return r
    def emit(lst):
        for x in lst: a(x.lstrip("*"))
    def spin_ge(label, srdn, voff, target, tmpv, tmps):
        a("s_mov_b32 s3, 0x40000")
        a("%s:" % label)
        a("buffer_load_dword %s, %s, %s, 0 offen sc1" % (v(tmpv), v(voff), srd(srdn)))
        a("s_sub_u32 s3, s3, 1")
        a("s_cbranch_scc1 %s_x" % label)
        a("s_waitcnt vmcnt(0)")
        a("v_readfirstlane_b32 %s, %s" % (s(tmps), v(tmpv)))
        a("s_cmp_lt_u32 %s, %s" % (s(tmps), target))
        a("s_cbranch_scc1 %s" % label)
        a("%s_x:" % label)

    a("; @launch grid=(256,1,1) block=(256,1,1) lds=%d" % LDS)
    a('.amdgcn_target "amdgcn-amd-amdhsa--gfx950"')
    a(".text")
    a(".globl %s" % KN)
    a(".p2align 8")
    a(".type %s,@function" % KN)
    a("%s:" % KN)
    a("s_cmp_ge_u32 s2, 256")
    a("s_cbranch_scc1 L_end")
    a("s_load_dwordx16 s[64:79], s[0:1], 0")
    if stamps: a("s_memrealtime %s" % sp(ST))
    nst[0] += 1
    a("s_getpc_b64 s[4:5]")
    a("L_pc:")
    a("v_lshlrev_b32 v1, 7, v0")
    a("s_mov_b32 s6, L_codeend-L_pc")
    a("v_cmp_gt_u32 vcc, s6, v1")
    a("s_and_saveexec_b64 s[6:7], vcc")
    a("s_cbranch_execz L_nopf")
    a("global_load_dword v2, v1, s[4:5]")
    a("L_nopf:")
    a("s_mov_b64 exec, -1")
    a("v_lshrrev_b32 v1, 6, v0")
    a("v_and_b32 %s, 63, v0" % v(vL))
    a("v_readfirstlane_b32 %s, v1" % s(sW))
    a("s_and_b32 %s, s2, 1" % s(sS))
    a("s_lshr_b32 %s, s2, 4" % s(sB))
    a("s_lshr_b32 s4, s2, 3")
    a("s_and_b32 s4, s4, 1")
    a("s_and_b32 s5, s2, 6")
    a("s_add_u32 %s, s5, s4" % s(sH))
    a("s_mul_i32 %s, %s, 2176" % (s(sW2176), s(sW)))
    a("s_mul_i32 %s, %s, 4352" % (s(sW4352), s(sW)))
    t0, t1, t2, t3, t4 = [v(x) for x in vt[:5]]
    a("v_lshlrev_b32 %s, 4, %s" % (v(vL16), v(vL)))
    a("s_lshl_b32 s5, %s, 11" % s(sW))
    a("v_add_u32 %s, s5, %s" % (v(vOffV), v(vL16)))
    a("v_lshrrev_b32 %s, 4, %s" % (t0, v(vL)))
    a("v_lshlrev_b32 %s, 4, %s" % (t1, t0))
    a("v_xor_b32 %s, %s, %s" % (v(vOffK), t1, v(vOffV)))
    a("v_and_b32 %s, 15, %s" % (t1, v(vL)))
    a("v_lshlrev_b32 %s, 4, %s" % (t1, t1))
    a("v_lshl_add_u32 %s, %s, 12, %s" % (v(vOffWo), t0, t1))
    a("v_bfe_u32 %s, %s, 4, 1" % (t2, v(vL)))
    a("v_and_b32 %s, 3, %s" % (t3, v(vL)))
    a("v_lshl_add_u32 %s, %s, 2, %s" % (t2, t2, t3))
    a("v_mul_u32_u24 %s, 1088, %s" % (t2, t2))
    a("v_bfe_u32 %s, %s, 2, 2" % (t3, v(vL)))
    a("v_lshl_add_u32 %s, %s, 8, %s" % (t2, t3, t2))
    a("v_lshrrev_b32 %s, 5, %s" % (t4, v(vL)))
    a("v_xor_b32 %s, %s, %s" % (t3, t3, t4))
    a("v_lshl_add_u32 %s, %s, 4, %s" % (v(vK0b), t3, t2))
    a("v_xor_b32 %s, 2, %s" % (t3, t3))
    a("v_lshl_add_u32 %s, %s, 4, %s" % (v(vK1b), t3, t2))
    a("v_bfe_u32 %s, %s, 2, 2" % (t2, v(vL)))
    a("v_mul_u32_u24 %s, 1088, %s" % (t2, t2))
    a("v_lshl_add_u32 %s, %s, 8, %s" % (t2, t4, t2))
    a("v_bfe_u32 %s, %s, 4, 1" % (t3, v(vL)))
    a("v_lshl_add_u32 %s, %s, 5, %s" % (t2, t3, t2))
    a("v_and_b32 %s, 3, %s" % (t3, v(vL)))
    a("v_lshl_add_u32 %s, %s, 3, %s" % (v(vVb), t3, t2))
    a("v_add_u32 %s, 8704, %s" % (v(vVb), v(vVb)))
    a("v_and_b32 %s, 1, %s" % (t3, v(vL)))
    a("v_lshl_add_u32 %s, %s, 4, %s" % (t2, t3, t2))
    a("v_bfe_u32 %s, %s, 1, 1" % (t3, v(vL)))
    a("v_lshl_add_u32 %s, %s, 3, %s" % (v(vWb), t3, t2))
    a("s_mov_b32 %s, 0" % s(sJI))
    a("s_mov_b32 %s, %d" % (s(sN), 0x7fff if dyn else 64))
    a("s_mov_b32 %s, %d" % (s(sK1), OOB))
    a("s_mov_b32 %s, %d" % (s(sK2), OOB))
    a("s_mul_i32 %s, %s, %d" % (s(sRaw), s(sS), 127 * 8192))
    a("s_lshl_b32 s5, %s, 14" % s(sS))
    a("s_sub_u32 %s, 8192, s5" % s(sStep))
    a("s_mov_b32 %s, 0" % s(sSlC))
    a("s_mov_b32 %s, 0" % s(sSlP))
    a("s_lshl_b32 s5, %s, 3" % s(sB))
    a("s_add_u32 s5, s5, %s" % s(sH))
    a("s_lshl_b32 s5, s5, 20")
    a("s_waitcnt lgkmcnt(0)")
    def mk(n, p, size, off=None):
        if off is None:
            a("s_mov_b32 %s, %s" % (s(n), s(T0 + 2 * p)))
            a("s_and_b32 %s, %s, 0xffff" % (s(n + 1), s(T0 + 2 * p + 1)))
        else:
            a("s_add_u32 %s, %s, %s" % (s(n), s(T0 + 2 * p), off))
            a("s_addc_u32 %s, %s, 0" % (s(n + 1), s(T0 + 2 * p + 1)))
            a("s_and_b32 %s, %s, 0xffff" % (s(n + 1), s(n + 1)))
        a("s_mov_b32 %s, %d" % (s(n + 2), size))
        a("s_mov_b32 %s, 0x20000" % s(n + 3))
    mk(sK, 1, 1 << 20, "s5"); mk(sV, 2, 1 << 20, "s5")
    mk(sX, 0, 512 * 1024); mk(sWQ, 3, 4 << 20); mk(sWO, 4, 4 << 20)
    mk(sOUT, 5, 512 * 1024); mk(sDBG, 6, 256); mk(sWS, 7, 512 << 20)
    a("s_cmp_eq_u32 %s, s4" % s(sS))
    a("s_cbranch_scc1 L_roleA")

    a("s_cmp_lg_u32 s2, 1")
    a("s_cbranch_scc1 L_noinit")
    a("v_lshlrev_b32 %s, 7, v0" % t0)
    a("v_mov_b32 %s, 0" % t1)
    a("s_mov_b32 s4, %d" % WS_SYNC)
    for i in range(3):
        a("buffer_store_dword %s, %s, %s, s4 offen sc1" % (t1, t0, srd(sWS)))
        if i < 2: a("s_add_u32 s4, s4, 32768")
    a("s_waitcnt vmcnt(0)")
    a("s_barrier")
    a("s_cmp_lg_u32 %s, 0" % s(sW))
    a("s_cbranch_scc1 L_noinit")
    a("v_mov_b32 %s, 1" % t0)
    a("s_mov_b64 exec, 1")
    a("buffer_store_dword %s, %s, %s, 0 offen sc1" % (t0, t1, srd(sDBG)))
    a("s_mov_b64 exec, -1")
    a("L_noinit:")
    a("L_fillB:")
    emit(kv_issue(sSlP))
    adv(sSlP)
    a("s_cmp_lt_u32 %s, 9" % s(sJI))
    a("s_cbranch_scc1 L_fillB")
    a("s_cmp_lg_u32 %s, 0" % s(sW))
    a("s_cbranch_scc1 L_join")
    a("v_mov_b32 %s, 0" % t0)
    spin_ge("L_spinIB", sDBG, vt[0], 1, vt[1], T0)
    a("s_branch L_join")

    a("L_roleA:")
    sRg, sHd, sXo, sWo_, sXb, sWb, sIt, sSlW, sTm = [T0 + i for i in range(9)]
    vX0, vX1, vOq = 96, 97, 98
    vXr = [100, 101, 102, 103]
    vXa = [104, 105, 106, 107]
    vWa = 108
    BF = 112
    a("s_and_b32 %s, %s, 3" % (s(sRg), s(sB)))
    a("s_lshr_b32 s4, %s, 2" % s(sB))
    a("s_and_b32 s5, s2, 7")
    a("s_lshl_b32 %s, s5, 2" % s(sHd))
    a("s_add_u32 %s, %s, s4" % (s(sHd), s(sHd)))
    a("s_add_u32 s4, s4, %s" % s(sRg))
    a("s_and_b32 s4, s4, 3")
    a("s_lshl_b32 %s, s4, 8" % s(sXo))
    a("s_lshl_b32 %s, s4, 20" % s(sWo_))
    a("s_lshl_b32 %s, %s, 17" % (s(sXb), s(sRg)))
    a("s_lshl_b32 s4, %s, 15" % s(sW))
    a("s_add_u32 %s, %s, s4" % (s(sXb), s(sXb)))
    a("s_lshl_b32 %s, %s, 8" % (s(sWb), s(sHd)))
    a("s_lshl_b32 s4, %s, 17" % s(sW))
    a("s_add_u32 %s, %s, s4" % (s(sWb), s(sWb)))
    a("v_lshrrev_b32 %s, 4, %s" % (t0, v(vL)))
    a("v_and_b32 %s, 7, %s" % (t1, v(vL)))
    a("v_xor_b32 %s, %s, %s" % (t1, t0, t1))
    a("v_lshrrev_b32 %s, 3, %s" % (t2, v(vL)))
    a("v_lshlrev_b32 %s, 10, %s" % (t2, t2))
    a("v_lshl_add_u32 %s, %s, 4, %s" % (v(vX0), t1, t2))
    a("v_xor_b32 %s, 64, %s" % (v(vX1), v(vX0)))
    a("v_and_b32 %s, 1, %s" % (t1, t0))
    a("v_lshlrev_b32 %s, 16, %s" % (t1, t1))
    a("v_lshrrev_b32 %s, 1, %s" % (t2, t0))
    a("v_lshl_add_u32 %s, %s, 15, %s" % (t1, t2, t1))
    a("v_and_b32 %s, 15, %s" % (t2, v(vL)))
    a("v_lshl_add_u32 %s, %s, 4, %s" % (v(vOq), t2, t1))
    def x_issue():
        a("s_lshl_b32 %s, %s, 12" % (s(sTm), s(sW)))
        a("s_add_u32 m0, %s, %s" % (s(sSlP), s(sTm)))
        a("s_add_u32 %s, %s, %s" % (s(sTm), s(sXb), s(sXo)))
        for i in range(4):
            a("buffer_load_dwordx4 %s, %s, %s offen %s lds" % (v(vX1 if i & 1 else vX0), srd(sX), s(sTm), qpol))
            if i < 3:
                a("s_add_u32 m0, m0, 1024")
                a("s_add_u32 %s, %s, 8192" % (s(sTm), s(sTm)))
        a("s_add_u32 %s, %s, 128" % (s(sXo), s(sXo)))
        a("s_and_b32 %s, %s, 1023" % (s(sXo), s(sXo)))
        adv(sSlP)
    def w_issue():
        a("s_add_u32 m0, %s, %s" % (s(sSlP), s(sW4352)))
        a("s_add_u32 %s, %s, %s" % (s(sTm), s(sWb), s(sWo_)))
        for i in range(4):
            a("buffer_load_dwordx4 %s, %s, %s offen %s lds" % (v(vOq), srd(sWQ), s(sTm), qpol))
            if i < 3:
                a("s_add_u32 m0, m0, 1088")
                a("s_add_u32 %s, %s, 8192" % (s(sTm), s(sTm)))
        a("s_add_u32 %s, %s, %d" % (s(sWo_), s(sWo_), 64 * 8192))
        a("s_and_b32 %s, %s, %d" % (s(sWo_), s(sWo_), (4 << 20) - 1))
        adv(sSlP)
    x_issue()
    a("s_mov_b32 %s, 0" % s(sIt))
    a("L_fillA:")
    w_issue(); x_issue()
    a("s_add_u32 %s, %s, 1" % (s(sIt), s(sIt)))
    a("s_cmp_lt_u32 %s, 4" % s(sIt))
    a("s_cbranch_scc1 L_fillA")
    a("v_and_b32 %s, 31, %s" % (t0, v(vL)))
    a("v_bfe_u32 %s, %s, 1, 3" % (t1, v(vL)))
    a("v_lshrrev_b32 %s, 5, %s" % (t2, v(vL)))
    a("v_xor_b32 %s, %s, %s" % (t1, t1, t2))
    a("v_lshlrev_b32 %s, 7, %s" % (t0, t0))
    a("v_lshl_add_u32 %s, %s, 4, %s" % (t0, t1, t0))
    a("s_lshl_b32 s4, %s, 12" % s(sW))
    a("v_add_u32 %s, s4, %s" % (v(vXr[0]), t0))
    for st in range(1, 4): a("v_xor_b32 %s, %d, %s" % (v(vXr[st]), st << 5, v(vXr[0])))
    for i in range(64): a("v_mov_b32 %s, 0" % v(O + i))
    a("s_mov_b32 %s, 0" % s(sIt))
    a("L_qa:")
    a("s_add_u32 %s, %s, %d" % (s(sSlW), s(sSlC), SLOT))
    a("s_cmp_ge_u32 %s, %d" % (s(sSlW), RING))
    a("s_cselect_b32 %s, 0, %s" % (s(sSlW), s(sSlW)))
    for st in range(4): a("v_add_u32 %s, %s, %s" % (v(vXa[st]), s(sSlC), v(vXr[st])))
    a("v_add_u32 %s, %s, %s" % (v(vWa), s(sSlW), v(vWb)))
    a("s_waitcnt vmcnt(28)")
    a("s_cmp_eq_u32 %s, 0" % s(sIt))
    a("s_cbranch_scc1 L_qa_go")
    a("s_waitcnt vmcnt(20)")
    a("s_cmp_lt_u32 %s, 7" % s(sIt))
    a("s_cbranch_scc1 L_qa_go")
    a("s_waitcnt vmcnt(12)")
    a("L_qa_go:")
    a("s_barrier")
    lds_ops, need_ = [], []
    for st in range(4):
        lds_ops.append("ds_read_b128 %s, %s" % (vr(BF + 4 * st, 4), v(vXa[st])))
        for t in range(4):
            f = KF + 16 * st + 4 * t
            for jj in range(2):
                lds_ops.append("ds_read_b64_tr_b16 %s, %s offset:%d" % (vr(f + 2 * jj, 2), v(vWa), st * 4352 + jj * 512 + t * 64))
            need_.append(len(lds_ops))
    issued = 0
    def more(upto):
        nonlocal issued
        while issued < min(upto, len(lds_ops)):
            a(lds_ops[issued]); issued += 1
    more(13)
    a("s_cmp_eq_u32 %s, 0" % s(sIt))
    a("s_cbranch_scc1 L_qa_c")
    a("s_cmp_ge_u32 %s, 6" % s(sIt))
    a("s_cbranch_scc1 L_qa_c")
    a("s_cmp_eq_u32 %s, 5" % s(sIt))
    a("s_cbranch_scc1 L_qa_k2")
    w_issue()
    a("s_cmp_eq_u32 %s, 4" % s(sIt))
    a("s_cbranch_scc1 L_qa_k1")
    x_issue()
    a("s_branch L_qa_c")
    a("L_qa_k2:")
    emit(kv_issue(sSlP)); adv(sSlP)
    a("L_qa_k1:")
    emit(kv_issue(sSlP)); adv(sSlP)
    a("L_qa_c:")
    for m in range(16):
        st, t = divmod(m, 4)
        a("s_waitcnt lgkmcnt(%d)" % (issued - need_[m]))
        a("v_mfma_f32_32x32x16_bf16 %s, %s, %s, %s" % (vr(O + 16 * t, 16), vr(KF + 4 * m, 4), vr(BF + 4 * st, 4), vr(O + 16 * t, 16)))
        more(need_[m] + 13)
    adv(sSlC, 2)
    a("s_add_u32 %s, %s, 1" % (s(sIt), s(sIt)))
    a("s_cmp_lt_u32 %s, 8" % s(sIt))
    a("s_cbranch_scc1 L_qa")
    a("v_mov_b32 %s, 0" % t0)
    a("buffer_load_dword %s, %s, %s, 0 offen sc1" % (t1, t0, srd(sDBG)))
    a("s_lshl_b32 s4, %s, 2" % s(sRg))
    a("s_add_u32 s4, s4, %s" % s(sW))
    a("s_lshl_b32 s4, s4, 5")
    a("s_add_u32 s4, s4, %s" % s(sHd))
    a("s_lshl_b32 s4, s4, 13")
    a("s_add_u32 s5, s4, 4096")
    for t in range(8):
        for k in range(4):
            a("v_cvt_pk_bf16_f32 %s, %s, %s" % (v(KF + 4 * t + k), v(O + 8 * t + 2 * k), v(O + 8 * t + 2 * k + 1)))
        a("buffer_store_dwordx4 %s, %s, %s, %s offen offset:%d sc1" % (vr(KF + 4 * t, 4), v(vL16), srd(sWS), "s4" if t < 4 else "s5", (t & 3) * 1024))
    a("s_barrier")
    a("L_fillA2:")
    emit(kv_issue(sSlP)); adv(sSlP)
    a("s_cmp_lt_u32 %s, 9" % s(sJI))
    a("s_cbranch_scc1 L_fillA2")
    a("s_waitcnt vmcnt(24)")
    a("s_barrier")
    a("s_cmp_lg_u32 %s, 0" % s(sW))
    a("s_cbranch_scc1 L_join")
    a("v_readfirstlane_b32 s4, %s" % t1)
    a("s_cmp_ge_u32 s4, 1")
    a("s_cbranch_scc1 L_initok")
    spin_ge("L_spinIA", sDBG, vt[0], 1, vt[1], 4)
    a("L_initok:")
    a("s_lshl_b32 s4, %s, 3" % s(sRg))
    a("s_and_b32 s5, s2, 7")
    a("s_add_u32 s4, s4, s5")
    a("s_lshl_b32 s4, s4, 7")
    a("s_add_u32 s4, s4, %d" % (WS_SYNC + SY_Q * 128))
    a("v_mov_b32 %s, 1" % t1)
    a("s_mov_b64 exec, 1")
    a("buffer_atomic_add %s, %s, %s, s4 offen sc1" % (t1, t0, srd(sWS)))
    a("s_mov_b64 exec, -1")

    a("L_join:")
    stamp()
    for i in range(64): a("v_mov_b32 %s, 0" % v(O + i))
    for i in range(8): a("v_mov_b32 %s, 0" % v(P[1] + i))
    a("v_mov_b32 %s, 0x%x" % (v(vMc), f2u(-3e38)))
    a("v_mov_b32 %s, 0" % v(vLs))
    a("v_mov_b32 %s, %d" % (v(vMisc), MISC))
    a("v_mov_b32 %s, 0" % v(vC))
    a("s_mov_b32 %s, 0x%x" % (s(sC), f2u(math.log2(math.e) / math.sqrt(128.0))))
    a("s_mov_b32 %s, 0x%x" % (s(sThr), f2u(4096.0)))
    mask = 0
    for i in range(16): mask |= 1 << (wo0 + wostep * i + wostep - 1)
    assert mask < (1 << 64) and wo0 >= 9
    mc, mi = mask >> 1, mask >> 9
    a("s_mov_b32 %s, 0x%x" % (s(sMC), mc & 0xffffffff)); a("s_mov_b32 %s, 0x%x" % (s(sMC + 1), mc >> 32))
    a("s_mov_b32 %s, 0x%x" % (s(sMI), mi & 0xffffffff)); a("s_mov_b32 %s, 0x%x" % (s(sMI + 1), mi >> 32))
    a("s_lshl_b32 s4, %s, 1" % s(sH))
    a("s_add_u32 s4, s4, %s" % s(sS))
    a("s_lshl_b32 s4, s4, 18")
    a("s_lshl_b32 s5, %s, 8" % s(sW))
    a("s_add_u32 %s, s4, s5" % s(sWoI))
    a("s_mov_b32 %s, 0" % s(sWoC))
    if dyn:
        a("s_cmp_eq_u32 %s, 0" % s(sW))
        a("s_cselect_b32 %s, %d, 0x7fff" % (s(sC0), SSTAT - 8 - cap))
        a("s_lshr_b32 s4, s2, 1")
        a("s_lshl_b32 s4, s4, 7")
        a("s_add_u32 %s, s4, %d" % (s(sClaim), WS_SYNC + SY_CLAIM * 128))
        a("s_mov_b32 %s, 0" % s(sLane))
        a("ds_write_b64 %s, %s" % (v(vMisc), vr(O, 2)))
    a("s_cmp_lg_u32 %s, 0" % s(sW))
    a("s_cbranch_scc1 L_qwait")
    a("s_lshr_b32 s4, %s, 2" % s(sB))
    a("s_lshl_b32 s4, s4, 3")
    a("s_add_u32 s4, s4, %s" % s(sH))
    a("s_lshl_b32 s4, s4, 7")
    a("s_add_u32 s4, s4, %d" % (WS_SYNC + SY_Q * 128))
    a("v_mov_b32 %s, s4" % t0)
    spin_ge("L_spinQ", sWS, vt[0], 4, vt[1], 4)
    a("L_qwait:")
    a("s_waitcnt lgkmcnt(0)")
    a("s_barrier")
    a("s_lshl_b32 s4, %s, 3" % s(sB))
    a("s_add_u32 s4, s4, %s" % s(sH))
    a("s_lshl_b32 s4, s4, 2")
    a("s_add_u32 s4, s4, %s" % s(sW))
    a("s_lshl_b32 s4, s4, 13")
    a("s_add_u32 s5, s4, 4096")
    for t in range(8):
        a("buffer_load_dwordx4 %s, %s, %s, %s offen offset:%d sc1" % (vr(Q + 4 * t, 4), v(vL16), srd(sWS), "s4" if t < 4 else "s5", (t & 3) * 1024))
    def addrs():
        a("v_add_u32 %s, %s, %s" % (v(vKa0), s(sSlC), v(vK0b)))
        a("v_add_u32 %s, %s, %s" % (v(vKa1), s(sSlC), v(vK1b)))
        a("v_add_u32 %s, %s, %s" % (v(vVa), s(sSlC), v(vVb)))
    def next_slot():
        a("s_mov_b32 %s, %s" % (s(sSlP), s(sSlC)))
        a("s_add_u32 %s, %s, %d" % (s(sSlC), s(sSlC), SLOT))
        a("s_cmp_ge_u32 %s, %d" % (s(sSlC), RING))
        a("s_cselect_b32 %s, 0, %s" % (s(sSlC), s(sSlC)))
    def kread(t): return "ds_read_b128 %s, %s offset:%d" % (vr(KF + 4 * t, 4), v(vKa1 if t & 1 else vKa0), (t >> 1) * 64)
    def vread(i, jj):
        u, t = divmod(i, 4)
        return "ds_read_b64_tr_b16 %s, %s offset:%d" % (vr(VF + 4 * i + 2 * jj, 2), v(vVa), u * 4352 + jj * 512 + t * 64)
    def qk(p, t): return "v_mfma_f32_32x32x16_bf16 %s, %s, %s, %s" % (vr(S[p], 16), vr(KF + 4 * t, 4), vr(Q + 4 * t, 4), "0" if t == 0 else vr(S[p], 16))
    def pv(p, i):
        u, t = divmod(i, 4)
        return "v_mfma_f32_32x32x16_bf16 %s, %s, %s, %s" % (vr(O + 16 * t, 16), vr(VF + 4 * i, 4), vr(P[p] + 4 * u, 4), vr(O + 16 * t, 16))
    addrs()
    a("s_waitcnt vmcnt(0)")
    a("s_barrier")
    stamp()
    for t in range(8): a(kread(t))
    for t in range(8):
        a("s_waitcnt lgkmcnt(%d)" % (7 - t))
        a(qk(0, t))
    next_slot(); addrs()
    a("s_mov_b32 %s, 1" % s(sJ))
    a("s_branch L_it1")

    def softmax_ops(q):
        ops = []
        for e in range(16 + 5):
            if e < 16: ops.append("v_fma_f32 %s, %s, %s, -%s" % (v(T + e), v(S[q] + e), s(sC), v(vMc)))
            if 0 <= e - 1 < 16: ops.append("v_exp_f32 %s, %s" % (v(T + e - 1), v(T + e - 1)))
            k = e - 3
            if k == 1: ops.append("v_add_f32 %s, %s, %s" % (v(vB0), v(T), v(T + 1)))
            elif k == 3: ops.append("v_add_f32 %s, %s, %s" % (v(vB1), v(T + 2), v(T + 3)))
            elif 4 <= k < 16:
                b = vB1 if k & 1 else vB0
                ops.append("v_add_f32 %s, %s, %s" % (v(b), v(b), v(T + k)))
            k = e - 4
            if 0 <= k < 16 and k & 1: ops.append("v_cvt_pk_bf16_f32 %s, %s, %s" % (v(P[q] + (k >> 1)), v(T + k - 1), v(T + k)))
        ops.append("v_add_f32 %s, %s, %s" % (v(vB0), v(vB0), v(vB1)))
        return ops

    def body(p, kind):
        q = 1 - p
        sm = softmax_ops(q) + ["v_cmp_nle_f32 vcc, %s, %s" % (v(vB0), s(sThr))]
        dm = kv_issue(sSlP) if kind == "kv" else wo_issue(sSlP)
        dm = [x for x in dm if x != "s_nop 0"]
        groups, cur = [], []
        for x in dm:
            cur.append(x.lstrip("*"))
            if x.startswith("*"): groups.append(cur); cur = []
        groups[-1] += cur
        n0 = 0
        if dyn and kind == "kv":
            a("ds_read_b32 %s, %s offset:%d" % (v(vTk), v(vMisc), 4 * p)); n0 = 1
        for t in range(8): a(kread(t))
        si = 0
        def fill(n):
            nonlocal si
            for _ in range(n):
                if si < len(sm): a(sm[si]); si += 1
        fill(9)
        for t in range(8):
            a("s_waitcnt lgkmcnt(%d)" % (7 - t + 2 * t))
            a(qk(p, t))
            a(vread(t, 0)); a(vread(t, 1))
            fill(3)
            if t == 1 and n0:
                a("v_readfirstlane_b32 %s, %s" % (s(T0), v(vTk)))
            if t == 2 and n0:
                a("s_cmp_ge_u32 %s, %d" % (s(T0), D))
                a("s_cselect_b32 %s, %s, 0x7fff" % (s(T0), s(sJI)))
                a("s_min_u32 %s, %s, %s" % (s(sN), s(sN), s(T0)))
        for i in range(8):
            if i % 2 == 0: a("s_waitcnt lgkmcnt(%d)" % (2 * (6 - i)))
            a(pv(p, i))
            if i < 8 and i % 2 == 0:
                g = groups[i // 2]
                k = next(j for j, x in enumerate(g) if x.startswith("buffer"))
                for x in g[:k]: a(x)
                fill(2)
                for x in g[k:]: a(x)
                fill(1)
            else:
                fill(4)
        fill(99)

    for p in (0, 1):
        q = 1 - p
        a("L_it%d:" % p)
        a("s_waitcnt vmcnt(28)")
        a("s_cmp_lt_u32 %s, %s" % (s(sJI), s(sN)))
        a("s_cbranch_scc0 L_nt%d" % p)
        a("s_waitcnt vmcnt(%d)" % (4 * cap))
        if dyn:
            a("s_cmp_ge_u32 %s, %s" % (s(sJ), s(sC0)))
            a("s_cbranch_scc1 L_claim%d" % p)
        a("L_nt%d:" % p)
        a("s_barrier")
        a("s_mov_b32 %s, %d" % (s(sPar), p))
        a("s_bitcmp1_b32 %s, 0" % s(sMC))
        a("s_cbranch_scc1 L_wo")
        a("s_bitcmp1_b32 %s, 0" % s(sMI))
        a("s_cbranch_scc1 L_bw%d" % p)
        body(p, "kv")
        a("L_be%d:" % p)
        a("s_cbranch_vccnz L_rare%d" % p)
        a("v_add_f32 %s, %s, %s" % (v(vLs), v(vLs), v(vB0)))
        a("L_back%d:" % p)
        next_slot(); addrs()
        a("s_lshr_b64 %s, %s, 1" % (sp(sMC), sp(sMC)))
        a("s_lshr_b64 %s, %s, 1" % (sp(sMI), sp(sMI)))
        a("s_cmp_eq_u32 %s, %s" % (s(sJ), s(sN)))
        a("s_cbranch_scc1 L_exit%d" % p)
        a("s_add_u32 %s, %s, 1" % (s(sJ), s(sJ)))
        if p == 1: a("s_branch L_it0")
    for p in (0, 1):
        a("L_bw%d:" % p)
        body(p, "wo")
        a("s_branch L_be%d" % p)
    for p in (0, 1):
        q = 1 - p
        a("L_rare%d:" % p)
        a("v_max3_f32 %s, %s, %s, %s" % (t0, v(S[q]), v(S[q] + 1), v(S[q] + 2)))
        for k in range(3, 15, 2): a("v_max3_f32 %s, %s, %s, %s" % (t0, t0, v(S[q] + k), v(S[q] + k + 1)))
        a("v_max_f32 %s, %s, %s" % (t0, t0, v(S[q] + 15)))
        a("v_mov_b32 %s, %s" % (t1, t0))
        a("v_permlane32_swap_b32 %s, %s" % (t0, t1))
        a("v_max_f32 %s, %s, %s" % (t0, t0, t1))
        a("v_mul_f32 %s, %s, %s" % (t0, s(sC), t0))
        a("v_max_f32 %s, %s, %s" % (t0, t0, v(vMc)))
        a("v_sub_f32 %s, %s, %s" % (t1, v(vMc), t0))
        a("v_exp_f32 %s, %s" % (t1, t1))
        a("v_mov_b32 %s, %s" % (v(vMc), t0))
        for x in softmax_ops(q): a(x)
        a("v_fma_f32 %s, %s, %s, %s" % (v(vLs), v(vLs), t1, v(vB0)))
        for i in range(64): a("v_mul_f32 %s, %s, %s" % (v(O + i), t1, v(O + i)))
        a("s_branch L_back%d" % p)
    if dyn:
        for p in (0, 1):
            a("L_claim%d:" % p)
            a("s_lshl_b64 exec, 1, %s" % s(sLane))
            a("ds_write_b32 %s, %s offset:%d" % (v(vMisc), v(vC), 4 * p))
            a("s_add_u32 %s, %s, 1" % (s(sLane), s(sLane)))
            a("s_cmp_ge_u32 %s, %d" % (s(sLane), cap))
            a("s_cselect_b32 %s, 0, %s" % (s(sLane), s(sLane)))
            a("s_waitcnt lgkmcnt(0)")
            a("v_mov_b32 %s, 1" % v(vC))
            a("v_mov_b32 %s, 0" % t0)
            a("buffer_atomic_add %s, %s, %s, %s offen sc0 sc1" % (v(vC), t0, srd(sWS), s(sClaim)))
            a("s_mov_b64 exec, -1")
            a("s_branch L_nt%d" % p)
    a("L_wo:")
    a("s_add_u32 %s, %s, %s" % (s(T0), s(sSlC), s(sW4352)))
    a("v_add_u32 %s, %s, %s" % (t0, s(T0), v(vWb)))
    a("s_bitcmp1_b32 %s, 0" % s(sMI))
    a("s_cbranch_scc1 L_wo_w")
    emit(kv_issue(sSlP))
    a("s_branch L_wo_r")
    a("L_wo_w:")
    emit(wo_issue(sSlP))
    a("L_wo_r:")
    for k in range(15):
        a("s_cmp_eq_u32 %s, %d" % (s(sWoC), k + 1))
        a("s_cbranch_scc1 L_wo%d" % (k + 1))
    for k in range(16):
        a("L_wo%d:" % k)
        for t in range(4):
            for jj in range(2):
                a("ds_read_b64_tr_b16 %s, %s offset:%d" % (ar(16 * k + 4 * t + 2 * jj, 2), t0, jj * 512 + t * 64))
        if k < 15: a("s_branch L_wo_e")
    a("L_wo_e:")
    a("s_add_u32 %s, %s, 1" % (s(sWoC), s(sWoC)))
    next_slot(); addrs()
    a("s_lshr_b64 %s, %s, 1" % (sp(sMC), sp(sMC)))
    a("s_lshr_b64 %s, %s, 1" % (sp(sMI), sp(sMI)))
    a("s_waitcnt lgkmcnt(0)")
    a("s_cmp_eq_u32 %s, 0" % s(sPar))
    a("s_cbranch_scc1 L_it0")
    a("s_branch L_it1")

    a("L_exit1:")
    for i in range(8): a("v_mov_b32 %s, %s" % (v(P[1] + i), v(P[0] + i)))
    a("L_exit0:")
    a("s_waitcnt vmcnt(28)")
    a("s_barrier")
    for i in range(7): a(vread(i, 0)); a(vread(i, 1))
    vRl, vLse = vB0, vB1
    a("v_mov_b32 %s, %s" % (t0, v(vLs)))
    a("s_nop 1")
    a("v_permlane32_swap_b32 %s, %s" % (t0, v(vLs)))
    a("v_add_f32 %s, %s, %s" % (v(vLs), t0, v(vLs)))
    a("v_rcp_f32 %s, %s" % (v(vRl), v(vLs)))
    a("v_log_f32 %s, %s" % (v(vLse), v(vLs)))
    for i in range(8):
        a("s_waitcnt lgkmcnt(%d)" % (12 if i == 0 else 2 * (7 - i)))
        a(pv(1, i))
        if i == 0: a(vread(7, 0)); a(vread(7, 1))
    a("v_add_f32 %s, %s, %s" % (v(vLse), v(vLse), v(vMc)))
    stamp()
    a("s_and_b32 s6, %s, 1" % s(sW))
    a("s_lshr_b32 s4, %s, 1" % s(sW))
    a("s_cmp_eq_u32 s4, %s" % s(sS))
    a("s_cbranch_scc1 L_recv")
    a("s_lshl_b32 s4, s2, 1")
    a("s_add_u32 s6, s4, s6")
    a("s_lshl_b32 s4, s6, 13")
    a("s_add_u32 s4, s4, %d" % WS_H1D)
    a("s_add_u32 s5, s4, 4096")
    a("s_lshl_b32 s7, s6, 8")
    a("s_add_u32 s7, s7, %d" % WS_H1L)
    a("v_lshlrev_b32 %s, 2, %s" % (t0, v(vL)))
    a("buffer_store_dword %s, %s, %s, s7 offen sc1" % (v(vLse), t0, srd(sWS)))
    for t in range(8):
        for k in range(8): a("v_mul_f32 %s, %s, %s" % (v(O + 8 * t + k), v(vRl), v(O + 8 * t + k)))
        for k in range(4):
            a("v_cvt_pk_bf16_f32 %s, %s, %s" % (v(KF + 4 * t + k), v(O + 8 * t + 2 * k), v(O + 8 * t + 2 * k + 1)))
        a("buffer_store_dwordx4 %s, %s, %s, %s offen offset:%d sc1" % (vr(KF + 4 * t, 4), v(vL16), srd(sWS), "s4" if t < 4 else "s5", (t & 3) * 1024))
    a("s_lshl_b32 s7, s6, 7")
    a("s_add_u32 s7, s7, %d" % (WS_SYNC + SY_H1 * 128))
    a("v_mov_b32 %s, 1" % t1)
    a("v_mov_b32 %s, 0" % t0)
    a("s_waitcnt vmcnt(0)")
    a("s_mov_b64 exec, 1")
    a("buffer_store_dword %s, %s, %s, s7 offen sc1" % (t1, t0, srd(sWS)))
    a("s_mov_b64 exec, -1")
    a("s_barrier")
    a("s_branch L_gemm")
    a("L_recv:")
    a("s_xor_b32 s4, s2, 1")
    a("s_lshl_b32 s4, s4, 1")
    a("s_add_u32 %s, s4, s6" % s(T0))
    a("s_lshl_b32 s7, %s, 7" % s(T0))
    a("s_add_u32 s7, s7, %d" % (WS_SYNC + SY_H1 * 128))
    a("v_mov_b32 %s, s7" % t0)
    for i in range(64): a("v_mul_f32 %s, %s, %s" % (v(O + i), v(vRl), v(O + i)))
    a("s_lshl_b32 s4, %s, 13" % s(T0))
    a("s_add_u32 s4, s4, %d" % WS_H1D)
    a("s_add_u32 s5, s4, 4096")
    a("s_lshl_b32 s7, %s, 8" % s(T0))
    a("s_add_u32 s7, s7, %d" % WS_H1L)
    spin_ge("L_spinH1", sWS, vt[0], 1, vt[1], T0 + 1)
    a("v_lshlrev_b32 %s, 2, %s" % (t0, v(vL)))
    a("buffer_load_dword %s, %s, %s, s7 offen sc1" % (t1, t0, srd(sWS)))
    for t in range(8):
        a("buffer_load_dwordx4 %s, %s, %s, %s offen offset:%d sc1" % (vr(KF + 4 * t, 4), v(vL16), srd(sWS), "s4" if t < 4 else "s5", (t & 3) * 1024))
    a("s_lshl_b32 s6, s6, 13")
    a("v_add_u32 %s, s6, %s" % (t4, v(vL16)))
    a("s_mov_b32 s7, 0xffff0000")
    a("s_waitcnt vmcnt(8)")
    a("v_sub_f32 %s, %s, %s" % (t0, v(vLse), t1))
    a("v_sub_f32 %s, %s, %s" % (t1, t1, v(vLse)))
    a("v_exp_f32 %s, %s" % (t0, t0))
    a("v_exp_f32 %s, %s" % (t1, t1))
    a("v_add_f32 %s, 1.0, %s" % (t0, t0))
    a("v_add_f32 %s, 1.0, %s" % (t1, t1))
    a("v_rcp_f32 %s, %s" % (t0, t0))
    a("v_rcp_f32 %s, %s" % (t1, t1))
    a("s_barrier")
    for t in range(8):
        for k in range(8): a("v_mul_f32 %s, %s, %s" % (v(O + 8 * t + k), t1, v(O + 8 * t + k)))
        a("s_waitcnt vmcnt(%d)" % (7 - t))
        for k in range(4):
            a("v_lshlrev_b32 %s, 16, %s" % (t2, v(KF + 4 * t + k)))
            a("v_and_b32 %s, s7, %s" % (t3, v(KF + 4 * t + k)))
            a("v_fma_f32 %s, %s, %s, %s" % (t2, t2, t0, v(O + 8 * t + 2 * k)))
            a("v_fma_f32 %s, %s, %s, %s" % (t3, t3, t0, v(O + 8 * t + 2 * k + 1)))
            a("v_cvt_pk_bf16_f32 %s, %s, %s" % (v(KF + 4 * t + k), t2, t3))
        a("ds_write_b128 %s, %s offset:%d" % (t4, vr(KF + 4 * t, 4), t * 1024))
    a("s_waitcnt lgkmcnt(0)")
    a("L_gemm:")
    a("s_barrier")
    stamp()
    ACC = [S[0], S[1], P[0], T]
    for k in range(12): a("ds_read_b128 %s, %s offset:%d" % (vr(KF + 4 * k, 4), v(vL16), k * 1024))
    a("s_lshl_b32 s4, %s, 19" % s(sB))
    a("s_lshl_b32 s5, %s, 17" % s(sW))
    a("s_add_u32 s4, s4, s5")
    a("s_and_b32 s6, s2, 15")
    a("s_lshl_b32 s5, s6, 11")
    a("s_add_u32 s4, s4, s5")
    a("s_add_u32 s4, s4, %d" % WS_H2)
    for k in range(16):
        a("s_waitcnt lgkmcnt(%d)" % min(11, 15 - k))
        for t in range(4):
            a("v_mfma_f32_32x32x16_bf16 %s, %s, %s, %s" % (vr(ACC[t], 16), ar(16 * k + 4 * t, 4), vr(KF + 4 * k, 4), "0" if k == 0 else vr(ACC[t], 16)))
            if t == 0 and k + 12 < 16: a("ds_read_b128 %s, %s offset:%d" % (vr(KF + 4 * (k + 12), 4), v(vL16), (k + 12) * 1024))
    for t in range(4):
        for u in range(2):
            d = O + 8 * t + 4 * u
            for k in range(4):
                a("v_cvt_pk_bf16_f32 %s, %s, %s" % (v(d + k), v(ACC[t] + 8 * u + 2 * k), v(ACC[t] + 8 * u + 2 * k + 1)))
            a("buffer_store_dwordx4 %s, %s, %s, s4 offen offset:%d sc1" % (vr(d, 4), v(vL16), srd(sWS), u * 1024))
        if t < 3: a("s_add_u32 s4, s4, 32768")
    a("s_waitcnt vmcnt(0)")
    a("s_barrier")
    stamp()
    a("s_cmp_lg_u32 %s, 0" % s(sW))
    a("s_cbranch_scc1 L_h2wait")
    a("s_lshl_b32 s4, %s, 7" % s(sB))
    a("s_add_u32 s4, s4, %d" % (WS_SYNC + SY_H2 * 128))
    a("v_mov_b32 %s, s4" % t0)
    a("v_mov_b32 %s, 1" % t1)
    a("s_mov_b64 exec, 1")
    a("buffer_atomic_add %s, %s, %s, 0 offen sc1" % (t1, t0, srd(sWS)))
    a("s_mov_b64 exec, -1")
    spin_ge("L_spinH2", sWS, vt[0], 16, vt[1], 4)
    a("L_h2wait:")
    a("s_barrier")
    stamp()
    a("s_lshl_b32 s4, %s, 19" % s(sB))
    a("s_lshl_b32 s5, s6, 15")
    a("s_add_u32 s4, s4, s5")
    a("s_lshr_b32 s7, %s, 1" % s(sW))
    a("s_lshl_b32 s5, s7, 14")
    a("s_add_u32 s4, s4, s5")
    a("s_and_b32 %s, %s, 1" % (s(T0), s(sW)))
    a("s_lshl_b32 s5, %s, 10" % s(T0))
    a("s_add_u32 s4, s4, s5")
    a("s_add_u32 s4, s4, %d" % WS_H2)
    for pch in range(8):
        a("buffer_load_dwordx4 %s, %s, %s, s4 offen offset:%d sc1" % (vr(KF + 4 * pch, 4), v(vL16), srd(sWS), (pch & 1) * 2048))
        if pch & 1: a("s_add_u32 s4, s4, 4096")
    a("s_mov_b32 %s, 0xffff0000" % s(T0 + 1))
    a("s_lshl_b32 s5, %s, 11" % s(T0))
    a("v_lshlrev_b32 %s, 1, %s" % (t4, v(vL16)))
    a("v_add_u32 %s, s5, %s" % (t4, t4))
    for pch in range(8):
        a("s_waitcnt vmcnt(%d)" % (7 - pch))
        for k in range(4):
            if pch == 0:
                a("v_lshlrev_b32 %s, 16, %s" % (v(T + 2 * k), v(KF + k)))
                a("v_and_b32 %s, %s, %s" % (v(T + 2 * k + 1), s(T0 + 1), v(KF + k)))
            else:
                a("v_lshlrev_b32 %s, 16, %s" % (t2, v(KF + 4 * pch + k)))
                a("v_and_b32 %s, %s, %s" % (t3, s(T0 + 1), v(KF + 4 * pch + k)))
                a("v_add_f32 %s, %s, %s" % (v(T + 2 * k), v(T + 2 * k), t2))
                a("v_add_f32 %s, %s, %s" % (v(T + 2 * k + 1), v(T + 2 * k + 1), t3))
    a("s_cmp_eq_u32 s7, 0")
    a("s_cbranch_scc1 L_fin")
    a("ds_write_b128 %s, %s offset:16384" % (t4, vr(T, 4)))
    a("ds_write_b128 %s, %s offset:16400" % (t4, vr(T + 4, 4)))
    a("s_waitcnt lgkmcnt(0)")
    a("s_barrier")
    a("s_branch L_done")
    a("L_fin:")
    a("v_and_b32 %s, 31, %s" % (t0, v(vL)))
    a("v_lshlrev_b32 %s, 10, %s" % (t0, t0))
    a("v_lshrrev_b32 %s, 5, %s" % (t1, v(vL)))
    a("v_lshl_add_u32 %s, %s, 4, %s" % (t0, t1, t0))
    a("s_lshl_b32 s4, %s, 15" % s(sB))
    a("s_lshl_b32 s5, s6, 6")
    a("s_add_u32 s4, s4, s5")
    a("s_lshl_b32 s5, %s, 5" % s(T0))
    a("s_add_u32 s4, s4, s5")
    a("s_barrier")
    a("ds_read_b128 %s, %s offset:16384" % (vr(T + 8, 4), t4))
    a("ds_read_b128 %s, %s offset:16400" % (vr(T + 12, 4), t4))
    a("s_waitcnt lgkmcnt(0)")
    for k in range(8): a("v_add_f32 %s, %s, %s" % (v(T + k), v(T + k), v(T + 8 + k)))
    for k in range(4): a("v_cvt_pk_bf16_f32 %s, %s, %s" % (v(T + 8 + k), v(T + 2 * k), v(T + 2 * k + 1)))
    a("buffer_store_dwordx4 %s, %s, %s, s4 offen" % (vr(T + 8, 4), t0, srd(sOUT)))
    if stamps:
        a("s_waitcnt vmcnt(0)")
        stamp()
        a("s_cmp_lg_u32 %s, 0" % s(sW))
        a("s_cbranch_scc1 L_done")
        a("s_lshl_b32 s4, s2, 7")
        a("s_add_u32 s4, s4, %d" % WS_STAMP)
        for i in range(16): a("v_mov_b32 %s, %s" % (v(i), s(ST + i)))
        a("v_mov_b32 %s, %s" % (v(16), s(sN)))
        a("v_mov_b32 %s, 0" % v(17))
        a("s_getreg_b32 s5, hwreg(HW_REG_XCC_ID)")
        a("s_and_b32 s5, s5, 15")
        a("v_mov_b32 %s, s5" % v(18))
        a("v_mov_b32 %s, 0" % v(19))
        a("v_mov_b32 %s, 0" % t0)
        for i in range(5): a("buffer_store_dwordx4 %s, %s, %s, s4 offen offset:%d" % (vr(4 * i, 4), t0, srd(sWS), 16 * i))
    a("L_done:")
    a("L_end:")
    a("s_endpgm")
    a("L_codeend:")
    a('.section .rodata,"a"')
    a(".p2align 6")
    a(".amdhsa_kernel %s" % KN)
    a(".amdhsa_next_free_vgpr 512")
    a(".amdhsa_next_free_sgpr 102")
    a(".amdhsa_accum_offset 256")
    a(".amdhsa_group_segment_fixed_size 0")
    a(".amdhsa_kernarg_size 64")
    a(".amdhsa_user_sgpr_count 2")
    a(".amdhsa_user_sgpr_kernarg_segment_ptr 1")
    a(".amdhsa_system_sgpr_workgroup_id_x 1")
    a(".end_amdhsa_kernel")
    lines, n = check(a.L, verbose=VERBOSE)
    return "\n".join(lines) + "\n"

VERBOSE = False
if __name__ == "__main__":
    import ast
    VERBOSE = "-v" in sys.argv
    args = [x for x in sys.argv[1:] if x != "-v"]
    out = args[0]
    kw = {}
    for x in args[1:]:
        k, val = x.split("=", 1)
        try: kw[k] = ast.literal_eval(val)
        except Exception: kw[k] = val
    open(out, "w").write(gen(**kw))
```
